```python
import torch

def _softmax(x, axis=-1):
    return torch.softmax(x, dim=axis)
def _gelu(x):
    return torch.nn.functional.gelu(x, approximate="tanh")
def _silu(x):
    return torch.nn.functional.silu(x)
def _sigmoid(x):
    return torch.sigmoid(x)
def _layernorm(x, axis=-1, eps=1e-5):
    m = x.mean(dim=axis, keepdim=True)
    v = x.var(dim=axis, keepdim=True, unbiased=False)
    return (x - m) / torch.sqrt(v + eps)
def _scatter_add(tgt, idx, src, axis=0):
    return tgt.clone().index_add_(axis, idx, src)
def _segment_sum(src, seg, n):
    out = torch.zeros((n,) + src.shape[1:], dtype=src.dtype)
    return out.index_add_(0, seg, src)
def _pad(x, pw):
    flat = tuple(v for pair in reversed(pw) for v in pair)
    return torch.nn.functional.pad(x, flat)

kernel_name = 'gated_mix__sliding_block__ssm_conv_h3__prompt'

def setup_inputs():

    _w = (lambda a: (lambda t: t.to(torch.bfloat16) if t.is_floating_point() else t)(torch.as_tensor(a)))
    def _A_setup():
        B, S, D = 1, 2048, 576
        return {
            "x": _w((lambda *s: torch.randn(*s, dtype=torch.bfloat16) * 0.05)(B, S, D)),
            "wqkv": _w((lambda *s: torch.randn(*s, dtype=torch.bfloat16) * 0.8)(D, 3 * D)),
            "wo": _w((lambda *s: torch.randn(*s, dtype=torch.bfloat16) * 0.05)(D, D)),
        }
    _A_in = _A_setup()

    def _B_setup():
        B, S, D = 1, 2048, 576
        ks = 4
        return {
            "q": _w((lambda *s: torch.randn(*s, dtype=torch.bfloat16) * 0.05)(B, S, D)),
            "k": _w((lambda *s: torch.randn(*s, dtype=torch.bfloat16) * 0.8)(B, S, D)),
            "v": _w((lambda *s: torch.randn(*s, dtype=torch.bfloat16) * 0.8)(B, S, D)),
            "shift_k": _w((lambda *s: torch.randn(*s, dtype=torch.bfloat16) * 0.8)(D, ks) * 0.5),
            "ssm_k": _w((lambda *s: torch.randn(*s, dtype=torch.bfloat16) * 1.6)(D, S) * (1.0 / S ** 0.5)),
            "ssm_D": _w((lambda *s: torch.randn(*s, dtype=torch.bfloat16) * 0.8)(D)),
        }
    _B_in = _B_setup()

    return {
        "A_x": _A_in["x"],
        "A_wqkv": _A_in["wqkv"],
        "A_wo": _A_in["wo"],
        "B_q": _B_in["q"],
        "B_k": _B_in["k"],
        "B_v": _B_in["v"],
        "B_shift_k": _B_in["shift_k"],
        "B_ssm_k": _B_in["ssm_k"],
        "B_ssm_D": _B_in["ssm_D"],
        "gate_w": _w((lambda *s: torch.randn(*s, dtype=torch.bfloat16) * 0.05)(576) * 16.0),
    }

def reference(A_x, A_wqkv, A_wo, B_q, B_k, B_v, B_shift_k, B_ssm_k, B_ssm_D, gate_w):
    def _A_ref(x, wqkv, wo):
        B, S, D = x.shape
        H = 32; Dh = D // H; W = 256
        qkv = (lambda x, *d: x.permute(*d))((x @ wqkv).reshape(B, S, 3, H, Dh), 2, 0, 3, 1, 4)
        q, k, v = qkv[0], qkv[1], qkv[2]
        scores = torch.einsum("bhqd,bhkd->bhqk", q, k) * (Dh ** -0.5)
        idx = torch.arange(S)
        mask = (idx[:, None] - idx[None, :] >= 0) & (idx[:, None] - idx[None, :] < W)
        scores = torch.where(mask[None, None], scores, -1e9)
        p = _softmax(scores, axis=-1)
        o = torch.einsum("bhqk,bhkd->bhqd", p, v)
        return (lambda x, *d: x.permute(*d))(o, 0, 2, 1, 3).reshape(B, S, D) @ wo

    def _B_ref(q, k, v, shift_k, ssm_k, ssm_D):
        B, S, D = q.shape
        ks = shift_k.shape[-1]
        k_pad = _pad(k, ((0, 0), (ks - 1, 0), (0, 0)))
        k_shift = torch.zeros_like(k)
        for t in range(ks):
            k_shift = k_shift + k_pad[:, t:t + S, :] * shift_k[:, ks - 1 - t][None, None, :]
        kv = k_shift * v
        L = 2 * S
        kv_pad = _pad(kv, ((0, 0), (0, S), (0, 0)))
        kf_pad = _pad(ssm_k, ((0, 0), (0, S)))
        kv_f = (lambda x, axes=(-2,-1): torch.fft.rfft2(x.float(), dim=axes))(kv_pad[:, None, :, :], axes=(1, 2))
        kf_f = (lambda x, axes=(-2,-1): torch.fft.rfft2(x.float(), dim=axes))(kf_pad[:, None, :], axes=(1, 2))
        kf_f = (lambda x, *d: x.permute(*d))(kf_f, 1, 2, 0)
        y_f = kv_f * kf_f[None, :, :, :]
        y = (lambda x, s, axes=(-2,-1): torch.fft.irfft2(x, s=s, dim=axes).to(torch.bfloat16))(y_f, (1, L), axes=(1, 2))[:, 0, :S, :]
        y = y + kv * ssm_D[None, None, :]
        return q * y

    x = A_x
    g = _sigmoid((x * gate_w).sum(-1, keepdims=True))
    a = _A_ref(x, A_wqkv, A_wo)
    b = _B_ref(x, B_k, B_v, B_shift_k, B_ssm_k, B_ssm_D)
    return g * a + (1 - g) * b
```

```python
S, D = 2048, 576
OFF_QKVT = 0
OFF_U = 8 << 20
OFF_Z = 12 << 20
OFF_O = 16 << 20
OFF_G = 20 << 20
SZ_ACT = S * D * 2
SZ_QKVT = 1728 * 2048 * 2

KA_X, KA_WQKV, KA_WO, KA_BQ, KA_K, KA_V, KA_SK, KA_H, KA_D, KA_GW, KA_OUT, KA_DBG, KA_WS = [8 * i for i in range(13)]


class Asm:
    def __init__(self):
        self.lines = []
        self.vm = []
        self.uid = 0

    def __call__(self, s):
        for l in s.split("\n"):
            l = l.strip()
            if l:
                self.lines.append("    " + l)

    def c(self, s):
        self.lines.append("    ; " + s)

    def label(self, l):
        self.lines.append(l + ":")

    def newlabel(self, base):
        self.uid += 1
        return "%s_%d" % (base, self.uid)

    def vmem(self, s, tag):
        self(s)
        self.vm.append(tag)

    def vmwait(self, tag, extra=""):
        last = max(i for i, t in enumerate(self.vm) if t == tag)
        n = len(self.vm) - 1 - last
        assert n <= 63, n
        self("s_waitcnt vmcnt(%d) %s" % (n, extra))

    def text(self):
        return "\n".join(self.lines) + "\n"


def srd(a, d, lo, hi, nbytes):
    a("s_mov_b32 s%d, s%d" % (d, lo))
    a("s_and_b32 s%d, s%d, 0xffff" % (d + 1, hi))
    a("s_mov_b32 s%d, %d" % (d + 2, nbytes))
    a("s_mov_b32 s%d, 0x00020000" % (d + 3))


def srd_off(a, d, lo, hi, off, nbytes):
    a("s_add_u32 s%d, s%d, %d" % (d, lo, off))
    a("s_addc_u32 s%d, s%d, 0" % (d + 1, hi))
    a("s_and_b32 s%d, s%d, 0xffff" % (d + 1, d + 1))
    a("s_mov_b32 s%d, %d" % (d + 2, nbytes))
    a("s_mov_b32 s%d, 0x00020000" % (d + 3))


def vr(b, n):
    return "v[%d:%d]" % (b, b + n - 1)


def ar(b, n):
    return "a[%d:%d]" % (b, b + n - 1)


def sr(b, n):
    return "s[%d:%d]" % (b, b + n - 1)


def kernel_header(name):
    return (".globl %s\n.p2align 8\n.type %s,@function\n%s:\n" % (name, name, name))


def kernel_desc(name, vgpr, accum, sgpr=102):
    return """.amdhsa_kernel %s
  .amdhsa_next_free_vgpr %d
  .amdhsa_next_free_sgpr %d
  .amdhsa_accum_offset %d
  .amdhsa_group_segment_fixed_size 0
  .amdhsa_kernarg_size 104
  .amdhsa_user_sgpr_count 2
  .amdhsa_user_sgpr_kernarg_segment_ptr 1
  .amdhsa_system_sgpr_workgroup_id_x 1
  .amdhsa_float_denorm_mode_32 3
.end_amdhsa_kernel
""" % (name, vgpr, sgpr, accum)


def lanemask(f):
    m = 0
    for l in range(64):
        if f(l):
            m |= 1 << l
    return m


def smov64(a, sreg, m):
    a("s_mov_b32 s%d, 0x%08x" % (sreg, m & 0xffffffff))
    a("s_mov_b32 s%d, 0x%08x" % (sreg + 1, m >> 32))


OFF_DBG = 32 << 20
STAMP_BASE = 72


class Stamps:
    def __init__(self, a, on, kidx, wslo, wshi, swave):
        self.a, self.on, self.kidx, self.n = a, on, kidx, 0
        self.wslo, self.wshi, self.swave = wslo, wshi, swave

    def setup(self):
        if not self.on: return
        a = self.a
        srd_off(a, 96, self.wslo, self.wshi, OFF_DBG + self.kidx * (1 << 20), 1 << 20)

    def mark(self):
        if not self.on: return
        assert self.n < 12
        self.a("s_memrealtime s[%d:%d]" % (STAMP_BASE + 2 * self.n, STAMP_BASE + 2 * self.n + 1))
        self.n += 1

    def dump(self, vtmp):
        if not self.on: return
        a = self.a
        a("s_waitcnt lgkmcnt(0)")
        a("s_mov_b64 exec, 1")
        a("s_lshl_b32 s100, s2, 4")
        a("s_add_u32 s100, s100, s%d" % self.swave)
        a("s_lshl_b32 s100, s100, 6")
        a("v_mov_b32 v%d, s100" % vtmp)
        for i in range(self.n):
            a("v_mov_b32 v%d, s%d" % (vtmp + 1, STAMP_BASE + 2 * i))
            a("buffer_store_dword v%d, v%d, s[96:99], 0 offen offset:%d" % (vtmp + 1, vtmp, 4 * i))
        a("s_mov_b64 exec, -1")


class Stamps2:
    def __init__(self, a, on, kidx, ws, swave, vbase=248):
        self.a, self.on, self.kidx, self.n, self.ws, self.swave, self.vb = a, on, kidx, 0, ws, swave, vbase

    def mark(self, wait=False):
        if not self.on: return
        a = self.a
        import os
        a("%s s[96:97]" % os.environ.get("STAMP_INS", "s_memrealtime"))
        a("s_waitcnt lgkmcnt(0)")
        a("v_mov_b32 v%d, s96" % (self.vb + self.n))
        self.n += 1

    def dump(self, vtmp):
        if not self.on: return
        a = self.a
        srd_off(a, 96, self.ws, self.ws + 1, OFF_DBG + self.kidx * (1 << 20), 1 << 20)
        a("s_mov_b64 exec, 1")
        a("s_lshl_b32 s100, s2, 4")
        a("s_add_u32 s100, s100, s%d" % self.swave)
        a("s_lshl_b32 s100, s100, 6")
        a("v_mov_b32 v%d, s100" % vtmp)
        for i in range(self.n):
            a("buffer_store_dword v%d, v%d, s[96:99], 0 offen offset:%d" % (self.vb + i, vtmp, 4 * i))
        a("s_mov_b64 exec, -1")
```

```python
import sys, importlib
sys.path.insert(0, "gen")
from common import *

HEADER = open("gated_mix__sliding_block__ssm_conv_h3__prompt.s.ref").read().split("; Override launch geometry")[0]

def build(mods, out, **kw):
    parts = []
    for m in mods:
        mod = importlib.import_module(m)
        parts.append(mod.gen(**kw.get(m, {})))
    txt = HEADER
    for l, _, _ in parts:
        txt += l + "\n"
    txt += '.amdgcn_target "amdgcn-amd-amdhsa--gfx950"\n.text\n'
    seen = set()
    for l, c, d in parts:
        if c in seen: continue
        seen.add(c)
        txt += c
    txt += ".p2align 4\ncode_end:\n    s_endpgm\n"
    txt += '.section .rodata,"a"\n'
    seen = set()
    for l, c, d in parts:
        if d in seen: continue
        seen.add(d)
        txt += ".p2align 6\n" + d
    open(out, "w").write(txt)

if __name__ == "__main__":
    out = sys.argv[1]
    mods = [m for m in sys.argv[2:] if not m.startswith("-")]
    kw = {}
    if "-stamps" in sys.argv:
        kw = {m: {"stamps": True} for m in mods if m != "empty"}
    build(mods, out, **kw)
```
